```python
import torch

def _softmax(x, axis=-1):
    return torch.softmax(x, dim=axis)
def _gelu(x):
    return torch.nn.functional.gelu(x, approximate="tanh")
def _silu(x):
    return torch.nn.functional.silu(x)
def _sigmoid(x):
    return torch.sigmoid(x)
def _layernorm(x, axis=-1, eps=1e-5):
    m = x.mean(dim=axis, keepdim=True)
    v = x.var(dim=axis, keepdim=True, unbiased=False)
    return (x - m) / torch.sqrt(v + eps)
def _scatter_add(tgt, idx, src, axis=0):
    return tgt.clone().index_add_(axis, idx, src)
def _segment_sum(src, seg, n):
    out = torch.zeros((n,) + src.shape[1:], dtype=src.dtype)
    return out.index_add_(0, seg, src)
def _pad(x, pw):
    flat = tuple(v for pair in reversed(pw) for v in pair)
    return torch.nn.functional.pad(x, flat)

kernel_name = 'concat_heads__linear_attn_block__grouped_kv_mqa__prompt'

def setup_inputs():

    _w = (lambda a: (lambda t: t.to(torch.bfloat16) if t.is_floating_point() else t)(torch.as_tensor(a)))
    def _A_setup():
        B, S, D = 1, 2048, 1024
        return {
            "x": _w((lambda *s: torch.randn(*s, dtype=torch.bfloat16) * 0.05)(B, S, D)),
            "wqkv": _w((lambda *s: torch.randn(*s, dtype=torch.bfloat16) * 0.8)(D, 3 * D)),
            "wo": _w((lambda *s: torch.randn(*s, dtype=torch.bfloat16) * 0.05)(D, D)),
        }
    _A_in = _A_setup()

    def _B_setup():
        B, S, D, H = 1, 2048, 1024, 32
        Dh = D // H
        return {
            "x": _w((lambda *s: torch.randn(*s, dtype=torch.bfloat16) * 0.05)(B, S, D)),
            "wq": _w((lambda *s: torch.randn(*s, dtype=torch.bfloat16) * 0.8)(D, H * Dh)),
            "wk": _w((lambda *s: torch.randn(*s, dtype=torch.bfloat16) * 0.8)(D, Dh)),
            "wv": _w((lambda *s: torch.randn(*s, dtype=torch.bfloat16) * 0.05)(D, Dh)),
            "wo": _w((lambda *s: torch.randn(*s, dtype=torch.bfloat16) * 0.05)(H * Dh, D)),
        }
    _B_in = _B_setup()

    return {
        "A_x": _A_in["x"],
        "A_wqkv": _A_in["wqkv"],
        "A_wo": _A_in["wo"],
        "B_x": _B_in["x"],
        "B_wq": _B_in["wq"],
        "B_wk": _B_in["wk"],
        "B_wv": _B_in["wv"],
        "B_wo": _B_in["wo"],
    }

def reference(A_x, A_wqkv, A_wo, B_x, B_wq, B_wk, B_wv, B_wo):
    def _A_ref(x, wqkv, wo):
        B, S, D = x.shape
        H = 32; Dh = D // H
        qkv = (lambda x, *d: x.permute(*d))((x @ wqkv).reshape(B, S, 3, H, Dh), 2, 0, 3, 1, 4)
        q, k, v = qkv[0], qkv[1], qkv[2]
        phi = lambda t: torch.where(t > 0, t + 1, torch.exp(t)) + 1e-6
        pq, pk = phi(q), phi(k)
        kv = torch.einsum("bhsd,bhse->bhde", pk, v)
        z = torch.einsum("bhsd->bhd", pk)
        num = torch.einsum("bhqd,bhde->bhqe", pq, kv)
        den = torch.einsum("bhqd,bhd->bhq", pq, z)[..., None] + 1e-6
        o = num / den
        return (lambda x, *d: x.permute(*d))(o, 0, 2, 1, 3).reshape(B, S, D) @ wo

    def _B_ref(x, wq, wk, wv, wo):
        B, S, D = x.shape
        H = 32
        Dh = D // H
        q = (lambda x, *d: x.permute(*d))((x @ wq).reshape(B, S, H, Dh), 0, 2, 1, 3)
        k = x @ wk
        v = x @ wv
        scores = torch.einsum("bhqd,bkd->bhqk", q, k) * (Dh ** -0.5)
        p = _softmax(scores, axis=-1)
        o = torch.einsum("bhqk,bkd->bhqd", p, v)
        return (lambda x, *d: x.permute(*d))(o, 0, 2, 1, 3).reshape(B, S, H * Dh) @ wo

    a = _A_ref(A_x, A_wqkv, A_wo)
    b = _B_ref(B_x, B_wq, B_wk, B_wv, B_wo)
    return torch.concatenate([a, b], axis=-1)
```

```python
import sys, struct

NAME = "concat_heads__linear_attn_block__grouped_kv_mqa__prompt"

WS_QB  = 0x000000
WS_PQ  = 0x400000
WS_KV  = 0x800000
WS_KVP = 0x900000
WS_ZP  = 0xB00000
WS_OA  = 0xC00000
WS_OB  = 0x1000000
WS_END = 0x1400000

def f32(x): return struct.unpack("<I", struct.pack("<f", x))[0]
LOG2E = 1.4426950408889634
QK_SCALE = LOG2E * (32 ** -0.5)

class Asm:
    def __init__(self): self.lines = []
    def __call__(self, s):
        for l in s.split("\n"):
            l = l.strip()
            if l: self.lines.append(("" if l.endswith(":") or l.startswith(".") else "    ") + l)
    def text(self): return "\n".join(self.lines) + "\n"

def vr(a, n): return f"v[{a}:{a+n-1}]"
def mfma32(d, a, b, c=None):
    cs = vr(d, 16) if c is None else (str(c) if c == 0 else vr(c, 16))
    return f"v_mfma_f32_32x32x16_bf16 {vr(d,16)}, {vr(a,4)}, {vr(b,4)}, {cs}"
def mfma16(d, a, b, c=None):
    cs = vr(d, 4) if c is None else (str(c) if c == 0 else vr(c, 4))
    return f"v_mfma_f32_16x16x32_bf16 {vr(d,4)}, {vr(a,4)}, {vr(b,4)}, {cs}"

def interleave(A, mf, fill, per=None, start=0):
    fill = list(fill)
    n = len(mf)
    for i, m in enumerate(mf):
        A(m)
        if i < start: continue
        k = per if per is not None else -(-len(fill) // max(n - i, 1))
        if i == n - 1: k = len(fill)
        for _ in range(min(k, len(fill))): A(fill.pop(0))

def srd(A, d, lo, hi, nbytes):
    A(f"s_mov_b32 s{d}, {lo}\ns_mov_b32 s{d+1}, {hi}\ns_mov_b32 s{d+2}, 0x{nbytes:x}\ns_mov_b32 s{d+3}, 0x00020000")

def kernel_head(A, name):
    A(f".globl {name}\n.p2align 8\n.type {name},@function\n{name}:")

def kernel_desc(name, vgpr, sgpr):
    acc = (vgpr + 3) // 4 * 4
    return f""".p2align 6
.amdhsa_kernel {name}
  .amdhsa_next_free_vgpr {vgpr}
  .amdhsa_next_free_sgpr {sgpr}
  .amdhsa_accum_offset {acc}
  .amdhsa_group_segment_fixed_size 0
  .amdhsa_kernarg_size 88
  .amdhsa_user_sgpr_count 2
  .amdhsa_user_sgpr_kernarg_segment_ptr 1
  .amdhsa_system_sgpr_workgroup_id_x 1
.end_amdhsa_kernel
"""

K1_SLOT = 53248
K1_LDS = 3 * K1_SLOT

def phi_pack(A, acc, dst, tmp, sL2E, sEPS):
    for i in range(0, 16, 2):
        A(f"v_pk_mul_f32 {vr(tmp+i,2)}, {vr(acc+i,2)}, s[{sL2E}:{sL2E+1}]")
    for i in range(16):
        A(f"v_exp_f32_e64 v{tmp+i}, v{tmp+i} clamp")
        A(f"v_max_f32_e32 v{acc+i}, s{sEPS}, v{acc+i}")
    for i in range(0, 16, 2):
        A(f"v_pk_add_f32 {vr(acc+i,2)}, {vr(acc+i,2)}, {vr(tmp+i,2)}")
    for i in range(8):
        A(f"v_cvt_pk_bf16_f32 v{dst+i}, v{acc+2*i}, v{acc+2*i+1}")

def pack(A, acc, dst):
    for i in range(8):
        A(f"v_cvt_pk_bf16_f32 v{dst+i}, v{acc+2*i}, v{acc+2*i+1}")

def gen_k1(A, cfg):
    rot = cfg.get("k1_rot", (2, 4))
    name = "proj_kernel"
    kernel_head(A, name)
    VX, VW, VE = 2, 6, 10
    AXB, AWB, AEB = 12, 16, 17
    AX, AW, AE = 18, 22, 23
    F = [24, 52]
    ACC = 80; ACCE = 208; TMP = 224
    XE = [240, 244]; AXE = 248
    def fx(f, sb): return F[f] + 4 * sb
    def fw(f, g): return F[f] + 16 + 4 * g
    def fe(f): return F[f] + 24
    def acc(g, sb): return ACC + 16 * (4 * g + sb)

    A("s_cmp_ge_u32 s2, 256\ns_cbranch_scc1 K1_end")
    A("s_load_dwordx4 s[44:47], s[0:1], 0")
    A("s_load_dwordx4 s[48:51], s[0:1], 24")
    A("s_load_dwordx4 s[52:55], s[0:1], 40")
    A("s_load_dwordx2 s[56:57], s[0:1], 80")
    A("v_lshrrev_b32 v1, 6, v0")
    A("v_and_b32 v0, 63, v0")
    A("s_and_b32 s3, s2, 7\ns_lshr_b32 s4, s2, 3")
    A("v_readfirstlane_b32 s24, v1")
    A("s_and_b32 s25, s3, 1\ns_lshl_b32 s25, s25, 3\ns_and_b32 s5, s4, 7\ns_add_u32 s25, s25, s5")
    A("s_lshr_b32 s26, s3, 1")
    A("s_lshr_b32 s27, s4, 3")
    A(f"s_mul_i32 s30, s5, {rot[0]}\ns_mul_i32 s6, s27, {rot[1]}\ns_add_u32 s30, s30, s6")
    A("s_movk_i32 s28, 6144\ns_cmp_eq_u32 s26, 3\ns_cselect_b32 s28, 2048, s28")
    A("s_lshl_b32 s33, s27, 9")
    A("s_mov_b32 s34, 0")
    A("s_sub_u32 s5, s26, 1\ns_cmp_lt_u32 s5, 2\ns_cbranch_scc0 K1_notkv")
    A("s_lshl_b32 s5, s5, 2\ns_add_u32 s35, s5, s27")
    A("s_lshl_b32 s33, s35, 8\ns_add_u32 s33, s33, 2048\ns_mov_b32 s34, 1792")
    A("K1_notkv:")
    A("v_lshrrev_b32 v24, 3, v0\nv_lshrrev_b32 v25, 4, v0\nv_and_b32 v26, 7, v0")
    A("s_lshl_b32 s5, s25, 7\ns_lshl_b32 s6, s24, 5\ns_add_u32 s5, s5, s6\ns_lshl_b32 s5, s5, 11")
    A("v_lshlrev_b32 v24, 11, v24\nv_add_u32 v24, s5, v24")
    for i in range(4):
        A(f"v_add_u32 v27, {4*i}, v25\nv_and_b32 v27, 7, v27\nv_xor_b32 v27, v27, v26")
        A(f"v_lshl_add_u32 v{VX+i}, v27, 4, v24")
        if i: A(f"v_add_u32 v{VX+i}, {i*(8*2048-1024)}, v{VX+i}")
    A("v_lshrrev_b32 v25, 5, v0\nv_and_b32 v26, 31, v0")
    A("v_bfe_u32 v28, v0, 4, 1\nv_mul_lo_u32 v28, v28, s34\nv_add_u32 v28, s33, v28")
    A("s_lshl_b32 s5, s24, 4")
    for i in range(4):
        A(f"v_add_u32 v27, {2*i}, v25")
        A(f"v_add_u32 v29, s5, v27\nv_mul_lo_u32 v29, v29, s28")
        A("v_and_b32 v27, 3, v27\nv_lshlrev_b32 v27, 2, v27\nv_xor_b32 v27, v27, v26")
        A(f"v_lshl_add_u32 v27, v27, 4, v28\nv_add_u32 v{VW+i}, v27, v29")
        if i: A(f"v_subrev_u32 v{VW+i}, {i*1024}, v{VW+i}")
    A(f"s_lshl_b32 s5, s24, 10\nv_lshlrev_b32 v{VE}, 4, v0\nv_add_u32 v{VE}, s5, v{VE}")
    A("v_and_b32 v24, 31, v0\nv_lshrrev_b32 v25, 5, v0\nv_bfe_u32 v26, v0, 1, 3")
    for kk in range(4):
        A(f"v_add_u32 v27, {2*kk}, v25\nv_xor_b32 v27, v27, v26\nv_lshlrev_b32 v27, 4, v27")
        A(f"v_lshl_add_u32 v{AXB+kk}, v24, 7, v27")
    A("v_bfe_u32 v26, v0, 2, 2\nv_bfe_u32 v27, v0, 4, 1\nv_and_b32 v28, 3, v0")
    A("v_lshl_add_u32 v29, v25, 3, v26")
    A("v_lshlrev_b32 v30, 5, v27\nv_lshl_add_u32 v30, v28, 3, v30")
    A("v_xor_b32 v31, s24, v26\nv_lshl_add_u32 v31, v31, 6, v30")
    A(f"v_lshl_add_u32 v{AWB}, v29, 9, v31")
    A(f"v_lshl_add_u32 v{AEB}, v29, 6, v30")
    for i in range(4): A(f"v_mov_b32 v{AX+i}, v{AXB+i}")
    A(f"v_mov_b32 v{AW}, v{AWB}\nv_mov_b32 v{AE}, v{AEB}")
    A("s_lshl_b32 s40, s24, 12")
    A("s_lshl_b32 s41, s24, 13\ns_add_u32 s41, s41, 16384")
    A("s_lshl_b32 s42, s24, 10\ns_add_u32 s42, s42, 49152")
    A("s_lshl_b32 s43, s28, 3")
    A("s_waitcnt lgkmcnt(0)")
    A("s_cmp_eq_u32 s26, 3")
    A("s_cselect_b32 s8, s48, s44\ns_cselect_b32 s9, s49, s45\ns_mov_b32 s10, 0x400000\ns_mov_b32 s11, 0x00020000")
    A("s_cselect_b32 s12, s50, s46\ns_cselect_b32 s13, s51, s47\ns_mov_b32 s14, 0x600000\ns_cselect_b32 s14, 0x200000, s14\ns_mov_b32 s15, 0x00020000")
    A("s_cmp_eq_u32 s27, 0")
    A("s_cselect_b32 s16, s52, s54\ns_cselect_b32 s17, s53, s55\ns_mov_b32 s18, 0x10000\ns_mov_b32 s19, 0x00020000")
    srd(A, 20, "s56", "s57", WS_END)
    A(f"s_mov_b32 s58, 0x{f32(LOG2E):x}\ns_mov_b32 s59, 0x{f32(LOG2E):x}\ns_mov_b32 s60, 0x{f32(1e-6):x}")

    def dma_setup():
        return ["s_add_u32 s5, s29, s30\ns_and_b32 s5, s5, 15\ns_lshl_b32 s36, s5, 7\ns_lshl_b32 s39, s5, 12",
                "s_mul_i32 s37, s5, s43\ns_lshl_b32 s37, s37, 3\ns_cmp_ge_u32 s29, 16",
                "s_cselect_b32 s10, 0, s10\ns_cselect_b32 s14, 0, s14\ns_cselect_b32 s18, 0, s18\ns_add_u32 s38, s37, s43"]
    def dma_issue(extra):
        r = []
        for i in range(4):
            pre = "s_add_u32 m0, s32, s40\ns_nop 0\n" if i == 0 else ""
            r.append(pre + f"buffer_load_dwordx4 v{VX+i}, s[8:11], s36 offen offset:{i*1024} lds")
        for hlf in range(2):
            for i in range(4):
                pre = (f"s_add_u32 s5, s32, s41\ns_add_u32 m0, s5, {hlf*4096}\ns_nop 0\n") if i == 0 else ""
                r.append(pre + f"buffer_load_dwordx4 v{VW+i}, s[12:15], s{37+hlf} offen offset:{i*1024} lds")
        if extra:
            r.append(f"s_add_u32 m0, s32, s42\ns_nop 0\nbuffer_load_dwordx4 v{VE}, s[16:19], s39 offen lds")
        r.append(f"s_add_u32 s29, s29, 1\ns_add_u32 s32, s32, {K1_SLOT}\ns_cmp_ge_u32 s32, {K1_LDS}\ns_cselect_b32 s32, 0, s32")
        return r
    def reads(f, kk, extra):
        r = []
        def rw(g):
            return [f"ds_read_b64_tr_b16 {vr(fw(f,g)+2*sec,2)}, v{AW} offset:{16384 + g*256 + (16*kk+4*sec)*512}" for sec in range(2)]
        rx = [f"ds_read_b128 {vr(fx(f,sb),4)}, v{AX+kk} offset:{sb*4096}" for sb in range(4)]
        r = [rx[0]] + rw(0) + [rx[1]] + rw(1) + [rx[2], rx[3]]
        if extra:
            r += [f"ds_read_b64_tr_b16 {vr(fe(f)+2*sec,2)}, v{AE} offset:{49152 + (16*kk+4*sec)*64}" for sec in range(2)]
        return r

    A("s_mov_b32 s29, 0\ns_mov_b32 s32, 0\ns_mov_b32 s31, 0")
    A("s_sub_u32 s5, s26, 1\ns_cmp_lt_u32 s5, 2\ns_cbranch_scc1 K1_kv")
    A("s_cmp_lg_u32 s26, 3\ns_cbranch_scc1 K1_q")
    A("s_cmp_eq_u32 s27, 0\ns_cbranch_scc1 K1_qk")
    A("s_cmp_eq_u32 s27, 1\ns_cbranch_scc1 K1_qv")

    def variant(tag, orient, extra):
        nd = 13 if extra else 12
        A(f"K1_{tag}:")
        for st in range(2):
            for s in dma_setup(): A(s)
            for s in dma_issue(extra): A(s)
        for r in range(ACC, ACC + 128 + (16 if extra else 0)): A(f"v_mov_b32 v{r}, 0")
        A(f"s_waitcnt vmcnt({nd})\ns_barrier")
        for s in reads(0, 0, extra): A(s)
        if extra: A(f"ds_read_b128 {vr(XE[0],4)}, v{AXE}")
        A("s_mov_b32 s7, 16")
        A(".p2align 6")
        A(f"K1_{tag}_loop:")
        def mf(f):
            m = []
            order = [(0,0),(0,1),(1,0),(1,1),(0,2),(1,2),(0,3),(1,3)]
            for g, sb in order:
                m.append(mfma32(acc(g,sb), fw(f,g), fx(f,sb)) if orient == 'T' else mfma32(acc(g,sb), fx(f,sb), fw(f,g)))
            return m
        dm = dma_setup() + dma_issue(extra)
        for kk in range(4):
            f = kk & 1
            A("s_waitcnt lgkmcnt(0)")
            m = mf(f)
            if extra:
                m.append(mfma32(ACCE, fe(f), XE[f]) if extra == 'T' else mfma32(ACCE, XE[f], fe(f)))
            if kk < 3:
                fill = reads(1 - f, kk + 1, extra)
                if extra: fill.append(f"ds_read_b128 {vr(XE[1-f],4)}, v{AXE+kk+1}")
                if kk == 0: fill2 = dm[:9]
                elif kk == 1: fill2 = dm[9:]
                else:
                    fill2 = [f"s_add_u32 s31, s31, {K1_SLOT}\ns_cmp_ge_u32 s31, {K1_LDS}\ns_cselect_b32 s31, 0, s31"]
                    fill2 += [f"v_add_u32 v{AX+i}, s31, v{AXB+i}" for i in range(4)]
                    fill2 += [f"v_add_u32 v{AW}, s31, v{AWB}"]
                    if extra:
                        fill2 += [f"v_add_u32 v{AE}, s31, v{AEB}"] + [f"v_add_u32 v{AXE+i}, s40, v{AX+i}" for i in range(4)]
                interleave(A, m[:4], fill)
                interleave(A, m[4:], fill2)
            else:
                A(m[0]); A(m[1])
                A(f"s_waitcnt vmcnt({nd})\ns_barrier")
                fill = reads(1 - f, 0, extra)
                if extra: fill.append(f"ds_read_b128 {vr(XE[1-f],4)}, v{AXE}")
                interleave(A, m[2:5], fill)
                interleave(A, m[5:], ["s_sub_u32 s7, s7, 1\ns_cmp_lg_u32 s7, 0"])
        A(f"s_cbranch_scc1 K1_{tag}_loop")
        A("s_waitcnt vmcnt(0) lgkmcnt(0)\ns_nop 15")


    def store_frag(src, soff_expr_sgpr, imm):
        A(f"buffer_store_dwordx4 {vr(src,4)}, v1, s[20:23], s{soff_expr_sgpr} offen offset:{imm}")
        A(f"buffer_store_dwordx4 {vr(src+4,4)}, v1, s[20:23], s{soff_expr_sgpr} offen offset:{imm+1024}")

    def epi_q(phi, base):
        A("v_lshlrev_b32 v1, 4, v0")
        A("s_lshl_b32 s5, s27, 3\ns_add_u32 s5, s5, s24\ns_lshl_b32 s5, s5, 6\ns_lshl_b32 s6, s25, 2\ns_add_u32 s5, s5, s6\ns_lshl_b32 s5, s5, 11")
        A(f"s_add_u32 s36, s5, 0x{base:x}\ns_add_u32 s37, s36, 4096\ns_add_u32 s38, s36, {4*64*2048}\ns_add_u32 s39, s38, 4096")
        n = 0
        for g in range(2):
            for sb in range(4):
                dst = 24 + 8 * (n % 4); n += 1
                if phi: phi_pack(A, acc(g, sb), dst, TMP, 58, 60)
                else: pack(A, acc(g, sb), dst)
                store_frag(dst, 36 + 2 * g + sb // 2, (sb % 2) * 2048)

    variant("q", 'T', None)
    A("s_cmp_eq_u32 s26, 3\ns_cbranch_scc1 K1_epi_bq")
    epi_q(True, WS_PQ)
    A("s_endpgm")
    A("K1_epi_bq:")
    epi_q(False, WS_QB)
    A("s_endpgm")
    for tag, eo in (("qk", 'T'), ("qv", 'N')):
        A(f"K1_{tag}:")
        for i in range(4): A(f"v_add_u32 v{AXE+i}, s40, v{AXB+i}")
        variant(tag + "x", 'T', eo)
        A("v_lshlrev_b32 v1, 4, v0")
        A("s_lshl_b32 s5, s25, 2\ns_add_u32 s5, s5, s24")
        if tag == "qk":
            A("s_add_u32 s5, s5, 63\ns_and_b32 s5, s5, 63")
            A(f"s_mov_b32 s62, 0x{f32(QK_SCALE):x}\ns_mov_b32 s63, 0x{f32(QK_SCALE):x}")
            for i in range(0, 16, 2): A(f"v_pk_mul_f32 {vr(ACCE+i,2)}, {vr(ACCE+i,2)}, s[62:63]")
        A(f"s_lshl_b32 s5, s5, 12\ns_add_u32 s36, s5, 0x{WS_KV + (0 if tag == 'qk' else 2048):x}")
        pack(A, ACCE, 64)
        store_frag(64, 36, 0)
        A("s_branch K1_epi_bq")
    variant("kv", 'N', None)
    KVA, ZA, ONES = 208, 224, 240
    T2 = 56
    A(f"v_mov_b32 v{ONES}, 0x3f803f80\nv_mov_b32 v{ONES+1}, 0x3f803f80\nv_mov_b32 v{ONES+2}, 0x3f803f80\nv_mov_b32 v{ONES+3}, 0x3f803f80")
    for sb in range(4):
        pk = 24 + 16 * (sb % 2); pv = pk + 8
        phi_pack(A, acc(0, sb), pk, T2, 58, 60)
        pack(A, acc(1, sb), pv)
        A("s_nop 1")
        for kk in range(2):
            first = (sb == 0 and kk == 0)
            A(mfma32(KVA, pk + 4 * kk, pv + 4 * kk, 0 if first else None))
            A(mfma32(ZA, pk + 4 * kk, ONES, 0 if first else None))
    A("v_lshlrev_b32 v1, 4, v0")
    A("s_lshl_b32 s5, s35, 2\ns_add_u32 s5, s5, s24\ns_lshl_b32 s5, s5, 4\ns_add_u32 s5, s5, s25")
    A(f"s_lshl_b32 s36, s5, 12\ns_add_u32 s36, s36, 0x{WS_KVP:x}")
    A(f"s_lshl_b32 s37, s5, 7\ns_add_u32 s37, s37, 0x{WS_ZP:x}")
    A("v_lshrrev_b32 v2, 5, v0\nv_lshlrev_b32 v2, 6, v2\nv_and_b32 v3, 31, v0")
    A("s_nop 15")
    for i in range(4):
        A(f"buffer_store_dwordx4 {vr(KVA+4*i,4)}, v1, s[20:23], s36 offen offset:{i*1024}")
    A("v_cmp_eq_u32 vcc, 0, v3\ns_and_saveexec_b64 s[62:63], vcc")
    for i in range(4):
        A(f"buffer_store_dwordx4 {vr(ZA+4*i,4)}, v2, s[20:23], s37 offen offset:{i*16}")
    A("K1_end:")
    A("s_endpgm")
    return kernel_desc(name, 256, 64), f"; @launch kernel={name} grid=(256,1,1) block=(256,1,1) lds={K1_LDS}"

K2_SCR = 131072
K2_LDS = K2_SCR + 4096

def gen_k2(A, cfg):
    name = "attn_kernel"
    kernel_head(A, name)
    Q = 4
    NEGM = 12
    S = [28, 44]
    P = 60
    KF = [68, 84]
    O = 100
    L = 116
    ONES = 120
    AD = 124
    T = 125
    def kf(p, kk): return KF[p] + 4 * kk
    def vf(p, kk): return KF[p] + 8 + 4 * kk

    A("s_cmp_ge_u32 s2, 256\ns_cbranch_scc1 K2_end")
    A("s_load_dwordx2 s[4:5], s[0:1], 80")
    A("v_lshrrev_b32 v1, 6, v0")
    A("v_and_b32 v2, 63, v0")
    A("s_and_b32 s6, s2, 7\ns_lshr_b32 s7, s2, 3")
    A("v_readfirstlane_b32 s24, v1")
    A("s_lshl_b32 s25, s6, 2\ns_and_b32 s3, s7, 3\ns_add_u32 s25, s25, s3")
    A("s_lshr_b32 s26, s7, 2\ns_lshl_b32 s26, s26, 3")
    A(f"v_lshlrev_b32 v3, 4, v2")
    A(f"v_mov_b32 v{AD}, v3")
    A("v_lshlrev_b32 v1, 3, v0")
    A("s_add_u32 s26, s26, s24")
    A("s_lshl_b32 s27, s25, 6\ns_add_u32 s27, s27, s26\ns_lshl_b32 s27, s27, 11")
    A(f"s_add_u32 s28, s27, 0x{WS_PQ:x}")
    if WS_QB: A(f"s_add_u32 s27, s27, 0x{WS_QB:x}")
    A(f"s_mov_b32 s29, 0x{WS_KV + 63*4096:x}")
    A("s_lshl_b32 s30, s24, 13")
    A(f"s_add_u32 s31, s30, 0x{WS_KV:x}")
    A("s_waitcnt lgkmcnt(0)")
    srd(A, 8, "s4", "s5", WS_END)
    srd(A, 12, "s4", "s5", WS_END)
    for kk in range(2): A(f"buffer_load_dwordx4 {vr(Q+4*kk,4)}, v3, s[8:11], s27 offen offset:{kk*1024}")
    for kk in range(2): A(f"buffer_load_dwordx4 {vr(kf(1,kk),4)}, v3, s[8:11], s29 offen offset:{kk*1024}")
    def dma_half(buf_sgpr_expr):
        r = []
        for j in range(2):
            r.append(f"s_add_u32 m0, {buf_sgpr_expr}, {j*4096}\ns_add_u32 s33, s31, {j*4096}")
            for i in range(4):
                r.append(f"buffer_load_dwordx4 v3, s[12:15], s33 offen offset:{i*1024} lds")
        r.append("s_add_u32 s31, s31, 0x10000")
        return r
    for s in dma_half("s30"): A(s)
    for kk in range(2): A(f"buffer_load_dwordx4 {vr(P+4*kk,4)}, v3, s[8:11], s28 offen offset:{kk*1024}")
    A(f"s_lshl_b32 s34, s25, 16\ns_add_u32 s34, s34, 0x{WS_KVP:x}")
    PT = 128
    for p in range(16):
        A(f"buffer_load_dwordx2 {vr(PT+2*p,2)}, v1, s[8:11], s34 offen")
        if p < 15: A("s_add_u32 s34, s34, 4096")
    A(f"v_and_b32 v{T}, 15, v0\nv_lshlrev_b32 v{T}, 3, v{T}")
    A(f"s_lshl_b32 s35, s25, 11\ns_add_u32 s35, s35, 0x{WS_ZP:x}")
    for p in range(16):
        A(f"buffer_load_dwordx2 {vr(PT+32+2*p,2)}, v{T}, s[8:11], s35 offen offset:{p*128}")
    A("s_add_u32 s32, s30, 0x10000")
    for s in dma_half("s32"): A(s)
    A(f"v_lshrrev_b32 v{T+1}, 2, v2\nv_lshrrev_b32 v{T+2}, 4, v2\nv_xor_b32 v{T+1}, v{T+1}, v{T+2}\nv_and_b32 v{T+1}, 1, v{T+1}")
    A(f"v_cmp_eq_u32 vcc, 0, v{T+1}\nv_mov_b32 v{T+2}, 0x3f803f80")
    A("s_nop 1")
    A(f"v_cndmask_b32 v{ONES}, 0, v{T+2}, vcc")
    for i in range(1, 4): A(f"v_mov_b32 v{ONES+i}, v{ONES}")
    for i in range(16): A(f"v_mov_b32 v{O+i}, 0")
    for i in range(4): A(f"v_mov_b32 v{L+i}, 0")
    A("s_waitcnt vmcnt(50)")
    A(mfma32(S[0], kf(1,0), Q, 0))
    A(mfma32(S[0], kf(1,1), Q+4))
    A("s_nop 15")
    def rowmax(src, dst, tmp):
        A(f"v_max3_f32 v{dst}, v{src}, v{src+1}, v{src+2}")
        for i in range(3, 15, 2): A(f"v_max3_f32 v{dst}, v{dst}, v{src+i}, v{src+i+1}")
        A(f"v_max_f32 v{dst}, v{dst}, v{src+15}")
        A(f"v_mov_b32 v{tmp}, v{dst}")
        A("s_nop 1")
        A(f"v_permlane32_swap_b32 v{dst}, v{tmp}")
        A("s_nop 1")
        A(f"v_max_f32 v{dst}, v{dst}, v{tmp}")
    rowmax(S[0], T+1, T+2)
    for i in range(16): A(f"v_sub_f32 v{NEGM+i}, 0, v{T+1}")
    for i in range(16): A(f"v_sub_f32 v{S[0]+i}, v{S[0]+i}, v{T+1}")
    A("s_waitcnt vmcnt(8)")
    for base in (PT, PT + 32):
        for st in (16, 8, 4, 2):
            for i in range(0, st, 2):
                A(f"v_pk_add_f32 {vr(base+i,2)}, {vr(base+i,2)}, {vr(base+st+i,2)}")
        A(f"v_cvt_pk_bf16_f32 v{base}, v{base}, v{base+1}")
    A(f"v_lshrrev_b32 v{PT+2}, 8, v0\nv_lshlrev_b32 v{PT+2}, 10, v{PT+2}")
    A(f"v_bfe_u32 v{PT+3}, v0, 1, 6\nv_lshl_add_u32 v{PT+2}, v{PT+3}, 4, v{PT+2}")
    A(f"v_bfe_u32 v{PT+3}, v0, 7, 1\nv_lshl_add_u32 v{PT+2}, v{PT+3}, 3, v{PT+2}")
    A(f"v_and_b32 v{PT+3}, 1, v0\nv_lshl_add_u32 v{PT+2}, v{PT+3}, 2, v{PT+2}")
    A(f"v_add_u32 v{PT+2}, 0x{K2_SCR:x}, v{PT+2}")
    A(f"ds_write_b32 v{PT+2}, v{PT}")
    A(f"v_lshrrev_b32 v{PT+4}, 1, v{T}\nv_add_u32 v{PT+4}, 0x{K2_SCR+2048:x}, v{PT+4}")
    A(f"ds_write_b32 v{PT+4}, v{PT+32}")
    A(f"v_add_u32 v{PT+5}, 0x{K2_SCR:x}, v3")
    A(f"v_lshrrev_b32 v{PT+6}, 5, v2\nv_lshlrev_b32 v{PT+6}, 5, v{PT+6}\nv_add_u32 v{PT+6}, 0x{K2_SCR+2048:x}, v{PT+6}")
    A("s_waitcnt lgkmcnt(0)\ns_barrier")
    KVF, ZF, NUM, DEN = PT + 8, PT + 16, PT + 32, PT + 48
    for kk in range(2):
        A(f"ds_read_b128 {vr(KVF+4*kk,4)}, v{PT+5} offset:{kk*1024}")
        A(f"ds_read_b128 {vr(ZF+4*kk,4)}, v{PT+6} offset:{kk*16}")
    def rec_reads(p, rec):
        return [f"ds_read_b128 {vr(KF[p]+4*i,4)}, v{AD} offset:{rec*4096 + i*1024}" for i in range(4)]
    for s in rec_reads(0, 0): A(s)
    A("s_waitcnt lgkmcnt(4)")
    A(mfma32(NUM, KVF, P, 0)); A(mfma32(DEN, ZF, P, 0))
    A(mfma32(NUM, KVF+4, P+4)); A(mfma32(DEN, ZF+4, P+4))
    A("s_lshr_b32 s36, s26, 2\ns_lshl_b32 s36, s36, 5\ns_add_u32 s36, s36, s25\ns_lshl_b32 s36, s36, 2\ns_and_b32 s37, s26, 3\ns_add_u32 s36, s36, s37\ns_lshl_b32 s36, s36, 11")
    A(f"s_add_u32 s37, s36, 0x{WS_OB:x}\ns_add_u32 s36, s36, 0x{WS_OA:x}")
    A("s_nop 7")
    A(f"v_add_f32 v{DEN}, 0x{f32(1e-6):x}, v{DEN}")
    A(f"v_rcp_f32 v{DEN}, v{DEN}")
    A("s_nop 0")
    for i in range(16): A(f"v_mul_f32 v{NUM+i}, v{NUM+i}, v{DEN}")
    pack(A, NUM, DEN + 4)
    for kk in range(2): A(f"buffer_store_dwordx4 {vr(DEN+4+4*kk,4)}, v3, s[8:11], s36 offen offset:{kk*1024}")
    for i in range(8): A(f"v_mov_b32 v{P+i}, 0")
    for i in range(4): A(f"v_mov_b32 v{vf(1,1)+i}, 0")
    A("s_waitcnt lgkmcnt(0)")
    A("s_mov_b32 s38, 0")
    A(".p2align 6")
    A("K2_loop:")
    def e(s, i): return f"v_exp_f32 v{s+i}, v{s+i}"
    def c(s, j): return f"v_cvt_pk_bf16_f32 v{P+j}, v{s+2*j}, v{s+2*j+1}"
    for b in range(16):
        p = b & 1; s = S[p]; sn = S[1-p]
        last = (b == 15)
        if last:
            A("s_waitcnt vmcnt(0)\ns_barrier")
            A(f"v_xor_b32 v{AD}, 0x10000, v{AD}")
        rr = rec_reads(1 - p, (b + 1) & 15)
        A(mfma32(sn, kf(p,0), Q, NEGM))
        A(rr[0]); A(rr[1]); A(rr[2])
        A(e(s,0)); A(e(s,1)); A(e(s,2)); A(e(s,3))
        A(mfma32(O, vf(1-p,1), P+4))
        A(rr[3])
        A(e(s,4)); A(e(s,5)); A(c(s,0)); A(c(s,1))
        A(mfma16(L, ONES, P+4))
        if last:
            A("s_and_b32 s33, s38, 1\ns_lshl_b32 s33, s33, 16\ns_add_u32 s32, s30, s33")
            A(f"s_cmp_ge_u32 s38, 2\ns_cselect_b32 s14, 0, s14")
            dm = dma_half("s32")
        else: dm = []
        def pop(n):
            for _ in range(n):
                if dm: A(dm.pop(0))
        A(e(s,6)); pop(2); A(e(s,7)); A(c(s,2)); pop(1)
        A(mfma32(sn, kf(p,1), Q+4))
        A(e(s,8)); pop(2); A(c(s,3)); A(e(s,9)); pop(2); A(e(s,10))
        A(mfma32(O, vf(p,0), P))
        A(e(s,11)); pop(2); A(e(s,12)); A(c(s,4)); A(c(s,5)); pop(2)
        A(mfma16(L, ONES, P))
        A(e(s,13)); A(e(s,14)); A(e(s,15)); A(c(s,6))
        if last: A("s_add_u32 s38, s38, 1\ns_cmp_lg_u32 s38, 4")
        A(c(s,7))
        A("s_waitcnt lgkmcnt(0)")
    A("s_cbranch_scc1 K2_loop")
    A("s_nop 0")
    A(mfma32(O, vf(1,1), P+4))
    A(mfma16(L, ONES, P+4))
    A("s_nop 15")
    A(f"v_add_f32 v{T}, abs(v{O}), abs(v{O+1})")
    for i in range(2, 16): A(f"v_add_f32 v{T}, v{T}, abs(v{O+i})")
    A(f"v_mov_b32 v{T+1}, 0x{f32(2.0**40):x}\nv_mov_b32 v{T+2}, 0x{f32(1e38):x}")
    A(f"v_cmp_lt_f32 vcc, v{L}, v{T+1}")
    A(f"v_cmp_lt_f32 s[40:41], v{T}, v{T+2}")
    A("s_nop 1")
    A("s_and_b64 vcc, vcc, s[40:41]")
    A("s_cmp_eq_u64 vcc, -1")
    A("s_cbranch_scc0 K2_slow")
    A("K2_fin:")
    A(f"v_rcp_f32 v{T}, v{L}")
    A("s_nop 0")
    for i in range(16): A(f"v_mul_f32 v{O+i}, v{O+i}, v{T}")
    pack(A, O, P)
    for kk in range(2): A(f"buffer_store_dwordx4 {vr(P+4*kk,4)}, v3, s[8:11], s37 offen offset:{kk*1024}")
    A("K2_end:")
    A("s_endpgm")
    A("K2_slow:")
    A(f"v_mov_b32 v{T}, 0xff800000")
    A(f"s_mov_b32 s38, 0x{WS_KV:x}")
    A("K2_slow_max:")
    for kk in range(2): A(f"buffer_load_dwordx4 {vr(kf(0,kk),4)}, v3, s[8:11], s38 offen offset:{kk*1024}")
    A("s_waitcnt vmcnt(0)")
    A(mfma32(S[0], kf(0,0), Q, 0)); A(mfma32(S[0], kf(0,1), Q+4))
    A("s_nop 15")
    rowmax(S[0], T+1, T+2)
    A(f"v_max_f32 v{T}, v{T}, v{T+1}")
    A(f"s_add_u32 s38, s38, 4096\ns_cmp_lt_u32 s38, 0x{WS_KV+64*4096:x}\ns_cbranch_scc1 K2_slow_max")
    for i in range(16): A(f"v_sub_f32 v{NEGM+i}, 0, v{T}")
    for i in range(16): A(f"v_mov_b32 v{O+i}, 0")
    for i in range(4): A(f"v_mov_b32 v{L+i}, 0")
    A("s_mov_b32 s38, 0")
    A("K2_slow_pv:")
    A(f"s_add_u32 s39, s38, 63\ns_and_b32 s39, s39, 63\ns_lshl_b32 s39, s39, 12\ns_add_u32 s39, s39, 0x{WS_KV:x}")
    A(f"s_lshl_b32 s33, s38, 12\ns_add_u32 s33, s33, 0x{WS_KV+2048:x}")
    for kk in range(2): A(f"buffer_load_dwordx4 {vr(kf(0,kk),4)}, v3, s[8:11], s39 offen offset:{kk*1024}")
    for kk in range(2): A(f"buffer_load_dwordx4 {vr(vf(0,kk),4)}, v3, s[8:11], s33 offen offset:{kk*1024}")
    A("s_waitcnt vmcnt(0)")
    A(mfma32(S[0], kf(0,0), Q, NEGM)); A(mfma32(S[0], kf(0,1), Q+4))
    A("s_nop 15")
    for i in range(16): A(e(S[0], i))
    A("s_nop 0")
    for j in range(8): A(c(S[0], j))
    A("s_nop 1")
    A(mfma32(O, vf(0,0), P)); A(mfma32(O, vf(0,1), P+4))
    A(mfma16(L, ONES, P)); A(mfma16(L, ONES, P+4))
    A("s_add_u32 s38, s38, 1\ns_cmp_lt_u32 s38, 64\ns_cbranch_scc1 K2_slow_pv")
    A("s_nop 15")
    A("s_branch K2_fin")
    return kernel_desc(name, 192, 48), f"; @launch kernel={name} grid=(256,1,1) block=(512,1,1) lds={K2_LDS}"

K3_SLOT = 32768
K3_NS = 4
K3_LDS = K3_SLOT * K3_NS

def gen_k3(A, cfg):
    rot = cfg.get("k3_rot", (4, 2))
    name = "oproj_kernel"
    kernel_head(A, name)
    VO, VW = 2, 3
    AOB, AWB = 8, 9
    AO, AW = 11, 12
    F = [16, 48]
    ACC = 80
    def fo(f, kk, sbi): return F[f] + 8 * kk + 4 * sbi
    def fw(f, kk, gi): return F[f] + 16 + 8 * kk + 4 * gi
    def acc(gi, sbi): return ACC + 16 * (2 * gi + sbi)
    A("s_cmp_ge_u32 s2, 256\ns_cbranch_scc1 K3_end")
    A("s_load_dwordx2 s[44:45], s[0:1], 16")
    A("s_load_dwordx4 s[48:51], s[0:1], 56")
    A("s_load_dwordx2 s[52:53], s[0:1], 80")
    A("v_lshrrev_b32 v1, 6, v0\nv_and_b32 v0, 63, v0")
    A("s_and_b32 s3, s2, 7\ns_lshr_b32 s4, s2, 3")
    A("v_readfirstlane_b32 s24, v1")
    A("s_lshr_b32 s26, s3, 2")
    A("s_and_b32 s25, s3, 3\ns_lshl_b32 s25, s25, 2\ns_and_b32 s5, s4, 3\ns_add_u32 s25, s25, s5")
    A("s_lshr_b32 s27, s4, 2")
    A(f"s_mul_i32 s30, s5, {rot[0]}\ns_mul_i32 s6, s27, {rot[1]}\ns_add_u32 s30, s30, s6")
    A(f"s_lshl_b32 s5, s25, 18\ns_lshl_b32 s6, s24, 12\ns_add_u32 s5, s5, s6")
    A(f"s_mov_b32 s6, 0x{WS_OB:x}\ns_cmp_eq_u32 s26, 0\ns_cselect_b32 s6, 0x{WS_OA:x}, s6\ns_add_u32 s5, s5, s6")
    A(f"v_lshlrev_b32 v{VO}, 4, v0\nv_add_u32 v{VO}, s5, v{VO}")
    A("v_lshrrev_b32 v16, 4, v0\nv_and_b32 v17, 15, v0\nv_lshlrev_b32 v18, 2, v16\nv_xor_b32 v17, v17, v18")
    A("v_lshlrev_b32 v16, 11, v16\nv_lshl_add_u32 v16, v17, 4, v16")
    A("s_lshl_b32 s5, s24, 15\ns_lshl_b32 s6, s27, 8\ns_add_u32 s5, s5, s6")
    A(f"v_add_u32 v{VW}, s5, v16")
    for i in range(1, 4): A(f"v_add_u32 v{VW+i}, {i*(8192-1024)}, v{VW}")
    A("s_and_b32 s5, s24, 1\ns_lshl_b32 s5, s5, 12")
    A(f"v_lshlrev_b32 v{AOB}, 4, v0\nv_add_u32 v{AOB}, s5, v{AOB}")
    A("v_lshrrev_b32 v16, 5, v0\nv_bfe_u32 v17, v0, 2, 2\nv_bfe_u32 v18, v0, 4, 1\nv_and_b32 v19, 3, v0")
    A("v_lshl_add_u32 v16, v16, 2, v17")
    A("v_lshlrev_b32 v18, 5, v18\nv_lshl_add_u32 v18, v19, 3, v18\nv_lshl_add_u32 v18, v16, 8, v18")
    A("s_and_b32 s5, s24, 2")
    for gi in range(2):
        A(f"s_add_u32 s6, s5, {gi}\nv_xor_b32 v19, s6, v17\nv_lshl_add_u32 v{AWB+gi}, v19, 6, v18")
    A(f"v_mov_b32 v{AO}, v{AOB}\nv_mov_b32 v{AW}, v{AWB}\nv_mov_b32 v{AW+1}, v{AWB+1}")
    A("s_lshl_b32 s40, s24, 12\ns_add_u32 s41, s40, 16384")
    A("s_waitcnt lgkmcnt(0)")
    srd(A, 8, "s52", "s53", WS_END)
    A("s_cmp_eq_u32 s26, 0\ns_cselect_b32 s12, s44, s48\ns_cselect_b32 s13, s45, s49\ns_mov_b32 s14, 0x200000\ns_mov_b32 s15, 0x00020000")
    srd(A, 16, "s50", "s51", 0x800000)
    def dma():
        r = ["s_add_u32 s5, s29, s30\ns_and_b32 s5, s5, 15\ns_lshl_b32 s36, s5, 14\ns_lshl_b32 s37, s5, 17",
             "s_cmp_ge_u32 s29, 16\ns_cselect_b32 s10, 0, s10\ns_cselect_b32 s14, 0, s14"]
        for i in range(4):
            pre = "s_add_u32 m0, s32, s40\ns_nop 0\n" if i == 0 else ""
            r.append(pre + f"buffer_load_dwordx4 v{VO}, s[8:11], s36 offen offset:{i*1024} lds")
        for i in range(4):
            pre = "s_add_u32 m0, s32, s41\ns_nop 0\n" if i == 0 else ""
            r.append(pre + f"buffer_load_dwordx4 v{VW+i}, s[12:15], s37 offen offset:{i*1024} lds")
        r.append(f"s_add_u32 s29, s29, 1\ns_add_u32 s32, s32, {K3_SLOT}\ns_and_b32 s32, s32, {K3_LDS-1}")
        return r
    def reads(f, hh):
        r = []
        for kk in range(2):
            for j in range(2):
                r.append(f"ds_read_b128 {vr(fo(f,kk,j),4)}, v{AO} offset:{hh*8192 + j*2048 + kk*1024}")
                for sec in range(2):
                    r.append(f"ds_read_b64_tr_b16 {vr(fw(f,kk,j)+2*sec,2)}, v{AW+j} offset:{16384 + (32*hh+16*kk+8*sec)*256}")
        return r
    def mf(f):
        return [mfma32(acc(gi,sbi), fw(f,kk,gi), fo(f,kk,sbi)) for kk in range(2) for gi, sbi in ((0,0),(1,1),(0,1),(1,0))]
    A("s_mov_b32 s29, 0\ns_mov_b32 s32, 0\ns_mov_b32 s31, 0")
    for st in range(K3_NS - 1):
        for s in dma(): A(s)
    for r in range(ACC, ACC + 64): A(f"v_mov_b32 v{r}, 0")
    A(f"s_waitcnt vmcnt({8*(K3_NS-2)})\ns_barrier")
    for s in reads(0, 0): A(s)
    A("s_mov_b32 s7, 16")
    A(".p2align 6")
    A("K3_loop:")
    A("s_waitcnt lgkmcnt(0)")
    m = mf(0)
    interleave(A, m[:4], reads(1, 1))
    fill2 = dma() + [f"s_add_u32 s31, s31, {K3_SLOT}\ns_and_b32 s31, s31, {K3_LDS-1}",
                     f"v_add_u32 v{AO}, s31, v{AOB}", f"v_add_u32 v{AW}, s31, v{AWB}", f"v_add_u32 v{AW+1}, s31, v{AWB+1}"]
    interleave(A, m[4:], fill2)
    A("s_waitcnt lgkmcnt(0)")
    m = mf(1)
    A(m[0]); A(m[1])
    A(f"s_waitcnt vmcnt({8*(K3_NS-2)})\ns_barrier")
    interleave(A, m[2:6], reads(0, 0))
    interleave(A, m[6:], ["s_sub_u32 s7, s7, 1\ns_cmp_lg_u32 s7, 0"])
    A("s_cbranch_scc1 K3_loop")
    A("s_waitcnt vmcnt(0) lgkmcnt(0)")
    A("v_and_b32 v1, 31, v0\nv_lshrrev_b32 v2, 5, v0\nv_lshlrev_b32 v1, 12, v1\nv_lshl_add_u32 v1, v2, 4, v1")
    A("s_lshl_b32 s5, s25, 7\ns_and_b32 s6, s24, 1\ns_lshl_b32 s6, s6, 6\ns_add_u32 s5, s5, s6\ns_lshl_b32 s5, s5, 12")
    A("s_lshl_b32 s6, s26, 11\ns_add_u32 s5, s5, s6\ns_lshl_b32 s6, s27, 8\ns_add_u32 s5, s5, s6")
    A("s_and_b32 s6, s24, 2\ns_lshl_b32 s6, s6, 6\ns_add_u32 s36, s5, s6")
    A(f"s_add_u32 s37, s36, {32*4096}")
    A("s_nop 7")
    n = 0
    for sbi in range(2):
        for gi in range(2):
            dst = 16 + 8 * n; n += 1
            pack(A, acc(gi, sbi), dst)
            A("s_nop 1")
            for q in range(2):
                A(f"v_permlane32_swap_b32 v{dst+4*q}, v{dst+4*q+2}")
                A(f"v_permlane32_swap_b32 v{dst+4*q+1}, v{dst+4*q+3}")
            for q in range(2):
                A(f"buffer_store_dwordx4 {vr(dst+4*q,4)}, v1, s[16:19], s{36+sbi} offen offset:{gi*64 + q*32}")
    A("K3_end:")
    A("s_endpgm")
    return kernel_desc(name, 144, 64), f"; @launch kernel={name} grid=(256,1,1) block=(256,1,1) lds={K3_LDS}"

def build(cfg=None):
    cfg = cfg or {}
    A = Asm()
    descs = []; launches = []
    for g in (gen_k1, gen_k2, gen_k3):
        d, l = g(A, cfg)
        descs.append(d); launches.append(l)
    head = "; concat_heads( linear-attention block , MQA block ) : 3 launches\n" + "\n".join(launches) + "\n"
    head += '.amdgcn_target "amdgcn-amd-amdhsa--gfx950"\n.text\n'
    return head + A.text() + '.section .rodata,"a"\n' + "".join(descs)

if __name__ == "__main__":
    out = sys.argv[1] if len(sys.argv) > 1 else f"cdna_kernels/{NAME}.s"
    open(out, "w").write(build())
    print("wrote", out)
```
